```python
import torch

def _softmax(x, axis=-1):
    return torch.softmax(x, dim=axis)
def _gelu(x):
    return torch.nn.functional.gelu(x, approximate="tanh")
def _silu(x):
    return torch.nn.functional.silu(x)
def _sigmoid(x):
    return torch.sigmoid(x)
def _layernorm(x, axis=-1, eps=1e-5):
    m = x.mean(dim=axis, keepdim=True)
    v = x.var(dim=axis, keepdim=True, unbiased=False)
    return (x - m) / torch.sqrt(v + eps)
def _scatter_add(tgt, idx, src, axis=0):
    return tgt.clone().index_add_(axis, idx, src)
def _segment_sum(src, seg, n):
    out = torch.zeros((n,) + src.shape[1:], dtype=src.dtype)
    return out.index_add_(0, seg, src)
def _pad(x, pw):
    flat = tuple(v for pair in reversed(pw) for v in pair)
    return torch.nn.functional.pad(x, flat)

kernel_name = 'sequential_preLN__spectral_gfnet__glu_gated_glu__prompt'

def setup_inputs():

    _w = (lambda a: (lambda t: t.to(torch.bfloat16) if t.is_floating_point() else t)(torch.as_tensor(a)))
    def _A_setup():
        B, S, D = 1, 2048, 448
        Df = D // 2 + 1
        return {
            "x": _w((lambda *s: torch.randn(*s, dtype=torch.bfloat16) * 0.05)(B, S, D)),
            "w_r": _w((lambda *s: torch.randn(*s, dtype=torch.bfloat16) * 0.4)(S, Df) * 0.02),
            "w_i": _w((lambda *s: torch.randn(*s, dtype=torch.bfloat16) * 0.4)(S, Df) * 0.02),
        }
    _A_in = _A_setup()

    def _B_setup():
        B, S, D, F = 1, 2048, 448, 1792
        return {
            "x": _w((lambda *s: torch.randn(*s, dtype=torch.bfloat16) * 0.05)(B, S, D)),
            "w_gate": _w((lambda *s: torch.randn(*s, dtype=torch.bfloat16) * 0.05)(D, F)),
            "w_up": _w((lambda *s: torch.randn(*s, dtype=torch.bfloat16) * 0.05)(D, F)),
            "w_down": _w((lambda *s: torch.randn(*s, dtype=torch.bfloat16) * 0.05)(F, D)),
        }
    _B_in = _B_setup()

    return {
        "A_x": _A_in["x"],
        "A_w_r": _A_in["w_r"],
        "A_w_i": _A_in["w_i"],
        "B_x": _B_in["x"],
        "B_w_gate": _B_in["w_gate"],
        "B_w_up": _B_in["w_up"],
        "B_w_down": _B_in["w_down"],
    }

def reference(A_x, A_w_r, A_w_i, B_x, B_w_gate, B_w_up, B_w_down):
    def _A_ref(x, w_r, w_i):
        B, S, D = x.shape
        X = (lambda x, axes=(-2,-1): torch.fft.rfft2(x.float(), dim=axes))(x, axes=(-2, -1))
        W = w_r + 1j * w_i
        X = X * W
        y = (lambda x, s, axes=(-2,-1): torch.fft.irfft2(x, s=s, dim=axes).to(torch.bfloat16))(X, (S, D), axes=(-2, -1))
        return y

    def _B_ref(x, w_gate, w_up, w_down):
        g = torch.einsum("bsd,df->bsf", x, w_gate)
        u = torch.einsum("bsd,df->bsf", x, w_up)
        h = _sigmoid(g) * u
        return torch.einsum("bsf,fd->bsd", h, w_down)

    x = A_x
    h = x + _A_ref(_layernorm(x, axis=-1), A_w_r, A_w_i)
    h2 = h + _B_ref(_layernorm(h, axis=-1), B_w_gate, B_w_up, B_w_down)
    return h2
```

```python
import re

TRANS = ("v_exp_f32", "v_log_f32", "v_rcp_f32", "v_rsq_f32", "v_sqrt_f32", "v_sin_f32", "v_cos_f32")
REG_RE = re.compile(r"(?<![\w.])([vas])(?:\[(\d+):(\d+)\]|(\d+))(?![\w])")

def regs_of(tok):
    out = set()
    for m in REG_RE.finditer(tok):
        k = m.group(1)
        if m.group(4) is not None:
            out.add((k, int(m.group(4))))
        else:
            for i in range(int(m.group(2)), int(m.group(3)) + 1):
                out.add((k, i))
    if re.search(r"\bvcc\b", tok): out |= {("s", 106), ("s", 107)}
    if re.search(r"\bm0\b", tok): out.add(("s", 124))
    if re.search(r"\bexec\b", tok): out |= {("s", 126), ("s", 127)}
    return out

class Ins:
    def __init__(self, text):
        self.text = text
        body = text.split(";")[0].strip()
        parts = body.split(None, 1)
        self.op = parts[0]
        ops = []
        if len(parts) > 1:
            depth = 0; cur = ""
            for ch in parts[1]:
                if ch == "[": depth += 1
                if ch == "]": depth -= 1
                if ch == "," and depth == 0:
                    ops.append(cur.strip()); cur = ""
                else:
                    cur += ch
            ops.append(cur.strip())
        self.ops = ops
        op = self.op
        self.slots = 1
        self.mfma = op.startswith("v_mfma")
        self.valu = op.startswith("v_") and not self.mfma
        self.salu = op.startswith("s_")
        self.vmem = op.startswith(("buffer_", "global_", "flat_"))
        self.ds = op.startswith("ds_")
        self.trans = op in TRANS or op.replace("_e64", "").replace("_e32", "") in TRANS
        self.dot = op.startswith("v_dot")
        self.dpp = ("_dpp" in op) or any(k in body for k in ("quad_perm", "row_shr", "row_ror", "row_mirror", "row_half_mirror", "row_bcast", "row_shl"))
        self.permlane = op.startswith("v_permlane")
        self.readlane = op.startswith(("v_readlane", "v_readfirstlane"))
        self.ldsdma = self.vmem and body.rstrip().endswith(" lds") or (self.vmem and " lds " in body + " ")
        self.W = set(); self.R = set()
        self.srcC = set(); self.srcAB = set()
        self.wide_store = set()
        if op == "s_nop":
            self.slots = int(ops[0], 0) + 1
            return
        if op in ("s_waitcnt", "s_barrier", "s_endpgm", "s_branch", "s_setprio", "s_sleep") or op.startswith("s_cbranch"):
            return
        first = regs_of(ops[0]) if ops else set()
        rest = set()
        for o in ops[1:]: rest |= regs_of(o)
        if self.mfma:
            self.W = first; self.srcAB = regs_of(ops[1]) | regs_of(ops[2]); self.srcC = regs_of(ops[3])
            self.R = self.srcAB | self.srcC
            self.passes = 8 if "32x32x16" in op else 4
            self.drange = ops[0]
            self.crange = ops[3].split()[0]
        elif self.vmem:
            if "store" in op or "atomic" in op:
                self.R = first | rest
                if "x4" in op or "x3" in op: self.wide_store = first
            elif self.ldsdma:
                self.R = first | rest | {("s", 124)}
            else:
                self.W = first; self.R = rest
                if "d16" in op: self.R |= first
        elif self.ds:
            if op.startswith(("ds_write", "ds_add")):
                self.R = first | rest
            else:
                self.W = first; self.R = rest
        elif op.startswith("v_cmp"):
            self.W = first; self.R = rest
            if op.startswith("v_cmpx"): self.W |= {("s", 126), ("s", 127)}
        elif op.startswith("s_cmp"):
            self.R = first | rest
        elif self.permlane:
            self.W = first | rest; self.R = first | rest
        elif op in ("v_add_co_u32", "v_addc_co_u32", "v_sub_co_u32"):
            self.W = first | regs_of(ops[1]); r = set()
            for o in ops[2:]: r |= regs_of(o)
            self.R = r
        else:
            self.W = first; self.R = rest
            if op.startswith(("v_fmac", "v_dot2c", "v_pk_fmac")): self.R |= first
            if "saveexec" in op: self.W |= {("s", 126), ("s", 127)}; self.R |= {("s", 126), ("s", 127)}
            if op == "v_cndmask_b32" and len(ops) == 3: self.R |= {("s", 106), ("s", 107)}

def vg(s): return {r for r in s if r[0] in "va"}
def sg(s): return {r for r in s if r[0] == "s"}

def need(P, I):
    n = 0
    if P.valu:
        w = vg(P.W)
        if I.mfma and (w & I.R): n = max(n, 2)
        if (I.dpp or I.permlane) and (w & I.R): n = max(n, 2)
        if I.readlane and (w & I.R): n = max(n, 1)
        if P.trans and not I.trans and (w & I.R): n = max(n, 1)
        if P.trans and I.trans and (w & I.R): n = max(n, 1)
        if P.dot and (w & (I.R | I.W)):
            if not (I.op == P.op and not (w & (regs_of(I.ops[1]) | regs_of(I.ops[2])))): n = max(n, 3)
        sw = sg(P.W)
        if sw:
            if I.vmem and (sw & I.R): n = max(n, 5)
            if (I.valu or I.mfma) and (sw & I.R): n = max(n, 4 if I.readlane else 2)
            if I.salu and (sw & I.R): n = max(n, 1)
            if ("s", 126) in sw:
                if I.dpp: n = max(n, 5)
                if I.mfma or I.readlane or I.permlane: n = max(n, 4)
    if P.mfma:
        big = 12 if P.passes == 8 else 8
        ovl = 10 if P.passes == 8 else 6
        if I.mfma:
            if P.W & I.srcAB: n = max(n, big)
            if P.W & I.srcC:
                if not (I.crange == P.drange and I.op == P.op): n = max(n, ovl)
            elif P.W & I.W: n = max(n, ovl)
        elif (I.valu or I.vmem or I.ds) and (P.W & (I.R | I.W)):
            n = max(n, big)
        if I.valu and (P.srcC & I.W): n = max(n, 7 if P.passes == 8 else 3)
    if P.wide_store and (P.wide_store & I.W): n = max(n, 2)
    if P.salu and (("s", 124) in P.W) and I.ldsdma: n = max(n, 1)
    return n

class Asm:
    def __init__(self):
        self.lines = []
        self.hist = []
        self.nops = 0
    def raw(self, text):
        self.lines.append(text)
    def label(self, name):
        self.lines.append(name + ":")
    def flush(self):
        self("s_nop 7"); self("s_nop 7")
    def __call__(self, text):
        for t in text.strip().split("\n"):
            t = t.strip()
            if not t or t.startswith(";"):
                if t: self.lines.append("    " + t)
                continue
            I = Ins(t)
            dist = 0; req = 0
            for P in reversed(self.hist):
                r = need(P, I) - dist
                if r > req: req = r
                dist += P.slots
                if dist > 24: break
            while req > 0:
                k = min(req, 16)
                nop = Ins("s_nop %d" % (k - 1))
                self.lines.append("    s_nop %d" % (k - 1)); self.hist.append(nop); self.nops += k
                req -= k
            self.lines.append("    " + t); self.hist.append(I)
            if len(self.hist) > 64: self.hist = self.hist[-40:]
    def reset(self):
        self.hist = []
    def text(self):
        return "\n".join(self.lines) + "\n"

def vr(b, n=1): return "v%d" % b if n == 1 else "v[%d:%d]" % (b, b + n - 1)
def ar(b, n=1): return "a%d" % b if n == 1 else "a[%d:%d]" % (b, b + n - 1)
def sr(b, n=1): return "s%d" % b if n == 1 else "s[%d:%d]" % (b, b + n - 1)
```

```python
import struct, sys, math
from asmlib import *

NAME = "sequential_preLN__spectral_gfnet__glu_gated_glu__prompt"
S, D, F = 2048, 448, 1792
MB = 1 << 20
OFF_Y, OFF_Z, OFF_LN, OFF_H, OFF_WGU, OFF_WD, OFF_HH = 0, 2 * MB, 4 * MB, 6 * MB, 8 * MB, 12 * MB, 16 * MB
SZ_Y = 15 * 64 * 2048
SZ_Z = 15 * 32 * 4096
SZ_LN = 128 * 14 * 1024
SZ_WGU = 56 * 14 * 4096
SZ_WD = 7 * 56 * 4096
SZ_HH = 128 * 56 * 1024
SZ_X = S * D * 2
SZ_W = S * 225 * 2
SZ_WM = D * F * 2

def fh(x):
    return "0x%08x" % struct.unpack("<I", struct.pack("<f", x))[0]

def srd(a, sb, sp, off, size):
    if off:
        a(f"s_add_u32 s{sb}, s{sp}, {off}")
        a(f"s_addc_u32 s{sb+1}, s{sp+1}, 0")
    else:
        a(f"s_mov_b32 s{sb}, s{sp}")
        a(f"s_mov_b32 s{sb+1}, s{sp+1}")
    a(f"s_mov_b32 s{sb+2}, {size}")
    a(f"s_mov_b32 s{sb+3}, 0x00020000")

def interleave(a, main, fill, per):
    fi = 0
    for m in main:
        a(m)
        k = per if isinstance(per, int) else per()
        for _ in range(k):
            if fi < len(fill):
                a(fill[fi]); fi += 1
    while fi < len(fill):
        a(fill[fi]); fi += 1

def kernel_begin(a, name):
    a.raw(f".globl {name}\n.p2align 8\n.type {name},@function\n{name}:")
    a.reset()

def lane_ids(a, vL=1, vLP=2, vQ=3, swave=3):
    a(f"v_lshrrev_b32 v{vL}, 6, v0")
    a(f"v_readfirstlane_b32 s{swave}, v{vL}")
    a(f"v_and_b32 v{vL}, 63, v0")
    a(f"v_and_b32 v{vLP}, 15, v0")
    a(f"v_lshrrev_b32 v{vQ}, 4, v{vL}")

def xq_reduce(vals, tmps):
    out = []
    for op in ("v_permlane16_swap_b32", "v_permlane32_swap_b32"):
        for v, t in zip(vals, tmps): out.append(f"v_mov_b32 v{t}, v{v}")
        for v, t in zip(vals, tmps): out.append(f"{op} v{v}, v{t}")
        for v, t in zip(vals, tmps): out.append(f"v_add_f32 v{v}, v{v}, v{t}")
    return out

def unpack2(lo, hi, src):
    return [f"v_lshlrev_b32 v{lo}, 16, v{src}", f"v_and_b32 v{hi}, 0xffff0000, v{src}"]

def ln_params2(s0, q0, s1, q1, t):
    o = []
    inv = fh(1.0 / D)
    o += [f"v_mul_f32 v{s0}, {inv}, v{s0}", f"v_mul_f32 v{s1}, {inv}, v{s1}",
          f"v_mul_f32 v{q0}, {inv}, v{q0}", f"v_mul_f32 v{q1}, {inv}, v{q1}",
          f"v_fma_f32 v{q0}, -v{s0}, v{s0}, v{q0}", f"v_fma_f32 v{q1}, -v{s1}, v{s1}, v{q1}",
          f"v_max_f32 v{q0}, 0, v{q0}", f"v_max_f32 v{q1}, 0, v{q1}",
          f"v_cvt_pk_bf16_f32 v{t}, v{s0}, v{s1}"] + unpack2(s0, s1, t)
    o += [f"v_cvt_pk_bf16_f32 v{t}, v{q0}, v{q1}"] + unpack2(q0, q1, t)
    eps = fh(1e-5)
    o += [f"v_add_f32 v{q0}, {eps}, v{q0}", f"v_add_f32 v{q1}, {eps}, v{q1}",
          f"v_cvt_pk_bf16_f32 v{t}, v{q0}, v{q1}"] + unpack2(q0, q1, t)
    o += [f"v_sqrt_f32 v{q0}, v{q0}", f"v_sqrt_f32 v{q1}, v{q1}",
          f"v_cvt_pk_bf16_f32 v{t}, v{q0}, v{q1}"] + unpack2(q0, q1, t)
    o += [f"v_rcp_f32 v{q0}, v{q0}", f"v_rcp_f32 v{q1}, v{q1}"]
    return o

MF = "v_mfma_f32_16x16x32_bf16"

def gen_k1(a):
    kernel_begin(a, "k1_kernel")
    a("s_cmp_ge_u32 s2, 256"); a("s_cbranch_scc1 K1_END")
    a("s_load_dwordx2 s[4:5], s[0:1], 0")
    a("s_load_dwordx2 s[6:7], s[0:1], 72")
    lane_ids(a)
    a("s_lshr_b32 s8, s2, 3"); a("s_and_b32 s9, s8, 3")
    a("s_lshr_b32 s8, s2, 5"); a("s_lshl_b32 s8, s8, 3"); a("s_and_b32 s10, s2, 7"); a("s_add_u32 s8, s8, s10")
    a("s_lshl_b32 s9, s9, 2"); a("s_add_u32 s9, s9, s3")
    a("s_cmp_ge_u32 s9, 15"); a("s_cbranch_scc1 K1_END")
    XF = lambda mt, t: 16 + (mt * 14 + t) * 4
    CF = lambda p, t: 128 + (p * 7 + t) * 4
    ACC = lambda h, mt, p: 184 + ((h * 2 + mt) * 2 + p) * 4
    T = lambda i, p: 184 + (i * 2 + p) * 8
    CS = lambda p: 216 + p * 4
    EF = lambda mp, mt: 224 + (mp * 2 + mt) * 4
    vXo, vOnes, vSig, vK = 4, 8, 12, 14
    vSt = 240
    vCf, vStep, vBase, vA = 248, 249, 250, 251
    a(f"v_mul_u32_u24 v{vXo}, 57344, v2")
    a(f"v_lshl_add_u32 v{vXo}, v3, 4, v{vXo}")
    a("s_mul_i32 s20, s8, 896"); a("s_add_u32 s21, s20, 917504")
    a("s_waitcnt lgkmcnt(0)")
    srd(a, 12, 4, 0, SZ_X); srd(a, 16, 6, OFF_Y, SZ_Y)
    for t in range(14):
        for mt in range(2):
            a(f"buffer_load_dwordx4 {vr(XF(mt,t),4)}, v{vXo}, s[12:15], s{20+mt} offen offset:{64*t}")
    for i in range(4): a(f"v_mov_b32 v{vOnes+i}, 0x3f803f80")
    a("s_lshl_b32 s22, s9, 4")
    a(f"v_add_u32 v{vCf}, s22, v2")
    a(f"v_and_b32 v{vSig}, 1, v{vCf}")
    a(f"v_cvt_f32_u32 v{vCf}, v{vCf}")
    a(f"v_cvt_f32_u32 v{vSig}, v{vSig}")
    a(f"v_fma_f32 v{vSig}, v{vSig}, -2.0, 1.0")
    a(f"v_mov_b32 v{vSig+1}, v{vSig}")
    a(f"v_mul_f32 v{vStep}, {fh(1.0/448)}, v{vCf}")
    a(f"v_lshlrev_b32 v{vBase}, 3, v3"); a(f"v_cvt_f32_u32 v{vBase}, v{vBase}")
    a(f"v_mul_f32 v{vBase}, v{vBase}, v{vStep}")
    a(f"v_mul_f32 v{vK}, {fh(1.0/14)}, v{vCf}"); a(f"v_cos_f32 v{vK}, v{vK}")
    a(f"v_add_f32 v{vK}, v{vK}, v{vK}"); a(f"v_mov_b32 v{vK+1}, v{vK}")
    for i in range(2):
        for j in range(8):
            A = vA + (j & 3)
            a(f"v_fmamk_f32 v{A}, v{vStep}, {fh(32.0*i+j)}, v{vBase}")
            a(f"v_cos_f32 v{T(i,0)+j}, v{A}")
            a(f"v_sin_f32 v{T(i,1)+j}, -v{A}")
    for t in range(7):
        i = t & 1
        if t >= 2:
            for p in range(2):
                for j in range(0, 8, 2):
                    a(f"v_pk_fma_f32 {vr(T(i,p)+j,2)}, {vr(vK,2)}, {vr(T(1-i,p)+j,2)}, {vr(T(i,p)+j,2)} neg_lo:[0,0,1] neg_hi:[0,0,1]")
        for p in range(2):
            for j in range(4):
                a(f"v_cvt_pk_bf16_f32 v{CF(p,t)+j}, v{T(i,p)+2*j}, v{T(i,p)+2*j+1}")
    vFk, vFs, vC, vS_ = 244, 246, 252, 253
    a(f"v_cvt_f32_u32 v{vFk}, v2"); a(f"v_mul_f32 v{vFk}, {fh(1.0/2048)}, v{vFk}")
    a(f"v_add_f32 v{vFk+1}, {fh(16.0/2048)}, v{vFk}")
    a(f"v_lshlrev_b32 v{vFs}, 8, v3"); a(f"v_add_u32 v{vFs}, s8, v{vFs}"); a(f"v_cvt_f32_u32 v{vFs}, v{vFs}")
    elist = []
    for mt in range(2):
        for r in range(4):
            elist.append(f"v_add_f32 v{vFs+1}, {fh(1024.0*mt+64.0*r)}, v{vFs}")
            for mp in range(2):
                elist.append(f"v_mul_f32 v{248+mp}, v{vFk+mp}, v{vFs+1}")
            for mp in range(2):
                elist.append(f"v_cos_f32 v{vC+2*mp}, v{248+mp}")
                elist.append(f"v_sin_f32 v{vC+2*mp+1}, v{248+mp}")
            for mp in range(2):
                elist.append(f"v_cvt_pk_bf16_f32 v{EF(mp,mt)+r}, v{vC+2*mp}, v{vC+2*mp+1}")
    cs = []
    for t in range(7):
        for p in range(2):
            c = "0" if t == 0 else vr(CS(p), 4)
            cs.append(f"{MF} {vr(CS(p),4)}, {vr(vOnes,4)}, {vr(CF(p,t),4)}, {c}")
    interleave(a, cs, elist, 5)
    vCs2 = 244
    for p in range(2):
        a(f"v_fma_f32 v{vCs2+2*p}, v{CS(p)}, v{vSig}, v{CS(p)}")
        a(f"v_mov_b32 v{vCs2+2*p+1}, v{vCs2+2*p}")
    def mm(t):
        h, tt = divmod(t, 7)
        o = []
        for mt in range(2):
            for p in range(2):
                c = "0" if tt == 0 else vr(ACC(h, mt, p), 4)
                o.append(f"{MF} {vr(ACC(h,mt,p),4)}, {vr(XF(mt,t),4)}, {vr(CF(p,tt),4)}, {c}")
        return o
    pend = []
    for t in range(14):
        a(f"s_waitcnt vmcnt({2*(13-t)})")
        dots = []
        for j in range(4):
            for mt in range(2):
                x = XF(mt, t) + j
                z0 = "0" if (t == 0 and j == 0) else f"v{vSt+2*mt}"
                z1 = "0" if (t == 0 and j == 0) else f"v{vSt+2*mt+1}"
                dots.append(f"v_dot2_f32_bf16 v{vSt+2*mt}, v{x}, v{vOnes}, {z0}")
                dots.append(f"v_dot2_f32_bf16 v{vSt+2*mt+1}, v{x}, v{x}, {z1}")
        pend += mm(t)
        now, pend = pend[:2], pend[2:]
        interleave(a, now, dots, 8)
    vT = 248
    fin = xq_reduce([vSt, vSt+1, vSt+2, vSt+3], [vT, vT+1, vT+2, vT+3])
    fin += ln_params2(vSt, vSt+1, vSt+2, vSt+3, vT)
    fin += [f"v_mul_f32 v{vSt}, v{vSt}, v{vSt+1}", f"v_mul_f32 v{vSt+2}, v{vSt+2}, v{vSt+3}"]
    vLw, vLr = 5, 6
    fin = [f"s_lshl_b32 s23, s3, 9",
           f"v_lshl_add_u32 v{vLw}, v2, 2, s23", f"v_lshl_add_u32 v{vLr}, v3, 4, s23"] + fin
    fin += [f"ds_write_b32 v{vLw}, v{vSt+1} offset:0", f"ds_write_b32 v{vLw}, v{vSt+3} offset:64",
            f"ds_write_b32 v{vLw}, v{vSt} offset:128", f"ds_write_b32 v{vLw}, v{vSt+2} offset:192",
            "s_waitcnt lgkmcnt(0)"]
    RS = lambda mt: 16 + mt * 4
    RM = lambda mt: 24 + mt * 4
    fin += [f"ds_read_b128 {vr(RS(0),4)}, v{vLr} offset:0", f"ds_read_b128 {vr(RS(1),4)}, v{vLr} offset:64",
            f"ds_read_b128 {vr(RM(0),4)}, v{vLr} offset:128", f"ds_read_b128 {vr(RM(1),4)}, v{vLr} offset:192"]
    interleave(a, pend, fin, 3)
    a("s_waitcnt lgkmcnt(0)")
    for mt in range(2):
        for p in range(2):
            lo, hi = ACC(0, mt, p), ACC(1, mt, p)
            for r in range(0, 4, 2):
                a(f"v_pk_fma_f32 {vr(lo+r,2)}, {vr(hi+r,2)}, {vr(vSig,2)}, {vr(lo+r,2)}")
                a(f"v_pk_mul_f32 {vr(hi+r,2)}, {vr(RM(mt)+r,2)}, {vr(vCs2+2*p,2)}")
                a(f"v_pk_fma_f32 {vr(lo+r,2)}, {vr(lo+r,2)}, {vr(RS(mt)+r,2)}, {vr(hi+r,2)} neg_lo:[0,0,1] neg_hi:[0,0,1]")
    PB = lambda mt: 32 + mt * 4
    PB2 = lambda mt: 40 + mt * 4
    for mt in range(2):
        pr, pi = ACC(0, mt, 0), ACC(0, mt, 1)
        for r in range(4):
            a(f"v_cvt_pk_bf16_f32 v{PB(mt)+r}, v{pr+r}, v{pi+r}")
            a(f"v_cvt_pk_bf16_f32 v{PB2(mt)+r}, v{pi+r}, -v{pr+r}")
    YR = lambda mp: 48 + mp * 4
    YI = lambda mp: 56 + mp * 4
    for mt in range(2):
        for mp in range(2):
            a(f"{MF} {vr(YR(mp),4)}, {vr(EF(mp,mt),4)}, {vr(PB(mt),4)}, {'0' if mt==0 else vr(YR(mp),4)}")
            a(f"{MF} {vr(YI(mp),4)}, {vr(EF(mp,mt),4)}, {vr(PB2(mt),4)}, {'0' if mt==0 else vr(YI(mp),4)}")
    a("s_lshl_b32 s24, s9, 6"); a("s_add_u32 s24, s24, s8"); a("s_lshl_b32 s24, s24, 11")
    a("v_lshlrev_b32 v4, 4, v1")
    for mp in range(2):
        o = 64 + mp * 4
        for r in range(4):
            a(f"v_cvt_pk_bf16_f32 v{o+r}, v{YR(mp)+r}, v{YI(mp)+r}")
        a(f"buffer_store_dwordx4 {vr(o,4)}, v4, s[16:19], s24 offen offset:{1024*mp}")
    a.label("K1_END")
    a("s_endpgm")
    return dict(name="k1_kernel", vgpr=256, acc=256, grid=256, block=256, lds=2048)

def aux_wgu(a, sid):
    a("s_load_dwordx4 s[4:7], s[0:1], 32")
    a("s_load_dwordx2 s[8:9], s[0:1], 72")
    a(f"s_lshl_b32 s10, s{sid}, 2"); a("s_add_u32 s10, s10, s3"); a("s_lshl_b32 s10, s10, 1")
    a("v_lshlrev_b32 v4, 3, v1")
    a("v_lshrrev_b32 v5, 3, v1"); a("v_mul_u32_u24 v5, 57344, v5")
    a("v_and_b32 v6, 1, v1"); a("v_lshl_add_u32 v5, v6, 10, v5")
    a("v_bfe_u32 v6, v1, 1, 2"); a("v_lshl_add_u32 v5, v6, 6, v5")
    a("s_mov_b32 s30, 0x05040100"); a("s_mov_b32 s31, 0x07060302")
    a("s_waitcnt lgkmcnt(0)")
    srd(a, 12, 4, 0, SZ_WM); srd(a, 16, 6, 0, SZ_WM); srd(a, 20, 8, OFF_WGU, SZ_WGU)
    for i in range(2):
        a(f"s_add_u32 s11, s10, {i}")
        a(f"s_mul_hi_u32 s24, s11, {(1<<32)//7+1}")
        a("s_mul_i32 s25, s24, 7"); a("s_sub_u32 s25, s11, s25")
        a("s_and_b32 s26, s24, 3")
        a("s_lshr_b32 s27, s24, 2")
        a("s_cmp_ge_u32 s27, 14"); a("s_cselect_b32 s28, 1, 0")
        a("s_mul_i32 s29, s28, 14"); a("s_sub_u32 s27, s27, s29")
        a("s_lshl_b32 s29, s27, 2"); a("s_add_u32 s29, s29, s26"); a("s_mul_i32 s29, s29, 28672")
        a("s_lshl_b32 s32, s25, 9"); a(f"s_add_u32 s{34+i}, s29, s32")
        a("s_mul_i32 s29, s25, 458752"); a("s_lshl_b32 s32, s27, 12"); a("s_add_u32 s29, s29, s32")
        a("s_lshl_b32 s32, s28, 11"); a("s_add_u32 s29, s29, s32"); a("s_lshl_b32 s32, s26, 8"); a(f"s_add_u32 s{36+i}, s29, s32")
        a("s_cmp_eq_u32 s28, 0")
        for k in range(2): a(f"s_cselect_b32 s{40+4*i+k}, s{12+k}, s{16+k}")
        a(f"s_mov_b32 s{40+4*i+2}, {SZ_WM}"); a(f"s_mov_b32 s{40+4*i+3}, 0x00020000")
        for j in range(8):
            a(f"buffer_load_dwordx2 {vr(16+i*16+2*j,2)}, v4, s[{40+4*i}:{43+4*i}], s{34+i} offen")
            if j < 7: a(f"s_add_u32 s{34+i}, s{34+i}, 3584")
    for i in range(2):
        a(f"s_waitcnt vmcnt({8 if i == 0 else 4})")
        for e in range(4):
            for k in range(4):
                lo, hi = 16 + i * 16 + 2 * (2 * k) + (e >> 1), 16 + i * 16 + 2 * (2 * k + 1) + (e >> 1)
                a(f"v_perm_b32 v{48+i*16+e*4+k}, v{hi}, v{lo}, s{30+(e&1)}")
        for e in range(4):
            a(f"buffer_store_dwordx4 {vr(48+i*16+e*4,4)}, v5, s[20:23], s{36+i} offen offset:{16*e}")
    a("s_endpgm")

def aux_wd(a, sid):
    a("s_load_dwordx2 s[4:5], s[0:1], 48")
    a("s_load_dwordx2 s[8:9], s[0:1], 72")
    a(f"s_lshl_b32 s10, s{sid}, 3"); a("s_add_u32 s10, s10, s3")
    a("v_lshlrev_b32 v4, 4, v1")
    a("v_cmp_gt_u32 vcc, 56, v1")
    a("v_mov_b32 v6, 0x7ff00000")
    a("v_cndmask_b32 v4, v6, v4, vcc")
    a("v_lshrrev_b32 v5, 3, v1"); a("v_mul_u32_u24 v5, 229376, v5")
    a("v_bfe_u32 v7, v1, 2, 1"); a("v_lshl_add_u32 v5, v7, 11, v5")
    a("v_and_b32 v7, 3, v1"); a("v_lshl_add_u32 v5, v7, 6, v5")
    a("v_cndmask_b32 v5, v6, v5, vcc")
    a("s_mov_b32 s30, 0x05040100"); a("s_mov_b32 s31, 0x07060302")
    a("s_mul_i32 s24, s10, 7168")
    a("s_lshr_b32 s25, s10, 2"); a("s_lshl_b32 s25, s25, 12"); a("s_and_b32 s26, s10, 3"); a("s_lshl_b32 s26, s26, 8"); a("s_add_u32 s25, s25, s26")
    a("s_waitcnt lgkmcnt(0)")
    srd(a, 12, 4, 0, SZ_WM); srd(a, 20, 8, OFF_WD, SZ_WD)
    for j in range(8):
        if j == 4: a("s_add_u32 s24, s24, 3584")
        a(f"buffer_load_dwordx4 {vr(16+4*j,4)}, v4, s[12:15], s24 offen offset:{896*(j&3)}")
    a("s_waitcnt vmcnt(0)")
    for e in range(8):
        for k in range(4):
            lo, hi = 16 + 4 * (2 * k) + (e >> 1), 16 + 4 * (2 * k + 1) + (e >> 1)
            a(f"v_perm_b32 v{48+e*4+k}, v{hi}, v{lo}, s{30+(e&1)}")
    for e in range(8):
        a(f"buffer_store_dwordx4 {vr(48+e*4,4)}, v5, s[20:23], s25 offen offset:{1024*(e>>2)+16*(e&3)}")
    a("s_endpgm")

def gen_k2(a):
    kernel_begin(a, "k2_kernel")
    NAUX = 98
    a(f"s_cmp_ge_u32 s2, {120+NAUX}"); a("s_cbranch_scc1 K2_END")
    lane_ids(a)
    a("s_cmp_ge_u32 s2, 120"); a("s_cbranch_scc1 K2_AUX")
    a("s_load_dwordx4 s[4:7], s[0:1], 8")
    a("s_load_dwordx2 s[8:9], s[0:1], 72")
    a("s_lshr_b32 s10, s2, 3")
    a("s_and_b32 s11, s2, 7")
    a("s_lshl_b32 s28, s11, 2"); a("s_add_u32 s28, s28, s3")
    YB = lambda t: 16 + t * 4
    YB2 = lambda t: 32 + t * 4
    AF = lambda mt, t: 48 + (mt * 4 + t) * 4
    WR, WI, XR, XI, VB, VB2, ZR, ZI = 112, 128, 144, 160, 176, 192, 208, 224
    a("s_lshl_b32 s29, s10, 17"); a("s_lshl_b32 s30, s11, 8"); a("s_add_u32 s29, s29, s30")
    a("s_lshl_b32 s30, s3, 2"); a("s_add_u32 s29, s29, s30")
    a("v_lshlrev_b32 v4, 13, v3"); a("v_lshl_add_u32 v4, v2, 4, v4"); a("v_add_u32 v5, 4096, v4")
    a("v_mul_u32_u24 v6, 57600, v3"); a("v_lshl_add_u32 v6, v2, 1, v6")
    a("s_mul_i32 s31, s28, 450"); a("s_lshl_b32 s30, s10, 5"); a("s_add_u32 s31, s31, s30")
    for i in range(32): a(f"v_mov_b32 v{WR+i}, 0")
    a("s_waitcnt lgkmcnt(0)")
    srd(a, 12, 8, OFF_Y, SZ_Y); srd(a, 16, 4, 0, SZ_W); srd(a, 20, 6, 0, SZ_W); srd(a, 24, 8, OFF_Z, SZ_Z)
    for t in range(4):
        for jj in range(4):
            a(f"buffer_load_dword v{YB(t)+jj}, v{4+(jj>>1)}, s[12:15], s29 offen offset:{2048*(jj&1)}")
        if t < 3: a("s_add_u32 s29, s29, 32768")
    for mt in range(4):
        for r in range(4):
            a(f"buffer_load_short_d16_hi v{WR+mt*4+r}, v6, s[16:19], s31 offen")
            a(f"buffer_load_short_d16_hi v{WI+mt*4+r}, v6, s[20:23], s31 offen")
            if not (mt == 3 and r == 3): a(f"s_add_u32 s31, s31, {14400 if r < 3 else 230400-3*14400}")
    a(f"v_cvt_f32_u32 v8, v2"); a(f"v_mul_f32 v8, {fh(1.0/64)}, v8")
    a("v_lshlrev_b32 v9, 2, v3"); a("v_cvt_f32_u32 v9, v9"); a("v_mul_f32 v9, v9, v8")
    for t in range(4):
        for jj in range(4):
            A = 10 + (jj & 1)
            c, s = XR + t * 4 + jj, XI + t * 4 + jj
            a(f"v_fmamk_f32 v{A}, v8, {fh(16.0*t+jj)}, v9")
            a(f"v_cos_f32 v{c}, v{A}"); a(f"v_sin_f32 v{s}, v{A}")
    for mt in range(4):
        for t in range(4):
            for jj in range(4):
                c, s = XR + t * 4 + jj, XI + t * 4 + jj
                rot = (mt * jj) & 3
                p = [(f"v{c}", f"v{s}"), (f"-v{s}", f"v{c}"), (f"-v{c}", f"-v{s}"), (f"v{s}", f"-v{c}")][rot]
                a(f"v_cvt_pk_bf16_f32 v{AF(mt,t)+jj}, {p[0]}, {p[1]}")
    a("s_mov_b32 s30, 0x80000000")
    a("s_waitcnt vmcnt(32)")
    for t in range(4):
        for jj in range(4):
            a(f"v_alignbit_b32 v{YB2(t)+jj}, v{YB(t)+jj}, v{YB(t)+jj}, 16")
            a(f"v_xor_b32 v{YB2(t)+jj}, s30, v{YB2(t)+jj}")
    for mt in range(4):
        for t in range(4):
            a(f"{MF} {vr(XR+mt*4,4)}, {vr(AF(mt,t),4)}, {vr(YB(t),4)}, {'0' if t==0 else vr(XR+mt*4,4)}")
            a(f"{MF} {vr(XI+mt*4,4)}, {vr(AF(mt,t),4)}, {vr(YB2(t),4)}, {'0' if t==0 else vr(XI+mt*4,4)}")
    a("s_waitcnt vmcnt(0)")
    for i in range(0, 16, 2):
        a(f"v_pk_mul_f32 {vr(ZR+i,2)}, {vr(XI+i,2)}, {vr(WI+i,2)}")
        a(f"v_pk_mul_f32 {vr(ZI+i,2)}, {vr(XI+i,2)}, {vr(WR+i,2)}")
        a(f"v_pk_fma_f32 {vr(ZR+i,2)}, {vr(XR+i,2)}, {vr(WR+i,2)}, {vr(ZR+i,2)} neg_lo:[0,0,1] neg_hi:[0,0,1]")
        a(f"v_pk_fma_f32 {vr(ZI+i,2)}, {vr(XR+i,2)}, {vr(WI+i,2)}, {vr(ZI+i,2)}")
        for k in range(2):
            a(f"v_cvt_pk_bf16_f32 v{VB+i+k}, v{ZR+i+k}, -v{ZI+i+k}")
            a(f"v_cvt_pk_bf16_f32 v{VB2+i+k}, v{ZI+i+k}, v{ZR+i+k}")
    for mt in range(4):
        for t in range(4):
            a(f"{MF} {vr(XR+mt*4,4)}, {vr(AF(mt,t),4)}, {vr(VB+t*4,4)}, {'0' if t==0 else vr(XR+mt*4,4)}")
            a(f"{MF} {vr(XI+mt*4,4)}, {vr(AF(mt,t),4)}, {vr(VB2+t*4,4)}, {'0' if t==0 else vr(XI+mt*4,4)}")
    a("s_lshl_b32 s29, s10, 5"); a("s_add_u32 s29, s29, s28"); a("s_lshl_b32 s29, s29, 12")
    a("v_lshlrev_b32 v4, 4, v1")
    for mt in range(4):
        for r in range(4):
            a(f"v_cvt_pk_bf16_f32 v{16+mt*4+r}, v{XR+mt*4+r}, v{XI+mt*4+r}")
        a(f"buffer_store_dwordx4 {vr(16+mt*4,4)}, v4, s[24:27], s29 offen offset:{1024*mt}")
    a.label("K2_END")
    a("s_endpgm")
    a.label("K2_AUX"); a.reset()
    a("s_sub_u32 s33, s2, 120")
    aux_wgu(a, 33)
    return dict(name="k2_kernel", vgpr=240, acc=240, grid=120 + NAUX, block=256, lds=0)

def gen_k3(a):
    kernel_begin(a, "k3_kernel")
    NAUX = 28
    a(f"s_cmp_ge_u32 s2, {128+NAUX}"); a("s_cbranch_scc1 K3_END")
    lane_ids(a)
    a("s_cmp_ge_u32 s2, 128"); a("s_cbranch_scc1 K3_AUX")
    a("s_load_dwordx2 s[4:5], s[0:1], 0")
    a("s_load_dwordx2 s[6:7], s[0:1], 72")
    a("s_lshr_b32 s8, s2, 6"); a("s_lshl_b32 s8, s8, 3"); a("s_and_b32 s9, s2, 7"); a("s_add_u32 s8, s8, s9")
    a("s_bfe_u32 s9, s2, 0x20004")
    a("s_bfe_u32 s10, s2, 0x10003")
    a("s_lshl_b32 s11, s8, 2"); a("s_add_u32 s11, s11, s9")
    ZF = lambda ti, t: 16 + (ti * 2 + t) * 4
    G1 = lambda t: 32 + t * 4
    G2 = lambda t: 40 + t * 4
    UA = lambda ti, ri: 48 + (ti * 2 + ri) * 4
    UE, UO, XX = 64, 68, 72
    CI = lambda b, ks: 80 + (b * 15 + ks) * 4
    T = lambda i: 200 + i * 16
    UB = lambda i: 232 + i * 4
    a("v_lshlrev_b32 v4, 14, v3"); a("v_lshl_add_u32 v4, v2, 4, v4")
    a("s_lshl_b32 s28, s3, 18"); a("s_lshl_b32 s29, s8, 8"); a("s_add_u32 s28, s28, s29"); a("s_lshl_b32 s29, s9, 2"); a("s_add_u32 s28, s28, s29")
    a("v_mul_u32_u24 v5, 57344, v2"); a("v_lshl_add_u32 v5, v3, 4, v5")
    a("s_mul_i32 s30, s10, 917504"); a("s_mul_i32 s29, s11, 896"); a("s_add_u32 s30, s30, s29"); a("s_lshl_b32 s29, s3, 6"); a("s_add_u32 s30, s30, s29")
    a("s_waitcnt lgkmcnt(0)")
    srd(a, 12, 6, OFF_Z, SZ_Z); srd(a, 16, 4, 0, SZ_X); srd(a, 20, 6, OFF_H, SZ_LN); srd(a, 24, 6, OFF_LN, SZ_LN)
    for ti in range(2):
        for t in range(2):
            for jj in range(4):
                a(f"buffer_load_dword v{ZF(ti,t)+jj}, v4, s[12:15], s28 offen")
                if jj < 3: a("s_add_u32 s28, s28, 4096")
            a(f"s_add_u32 s28, s28, {65536-3*4096}")
    a(f"buffer_load_dwordx4 {vr(XX,4)}, v5, s[16:19], s30 offen")
    a(f"buffer_load_dwordx4 {vr(XX+4,4)}, v5, s[16:19], s30 offen offset:448")
    sc = fh(2.0 / (S * D))
    a("s_lshl_b32 s29, s10, 10"); a("s_add_u32 s29, s29, s11")
    a("v_lshlrev_b32 v6, 6, v2"); a("v_add_u32 v6, s29, v6"); a("v_cvt_f32_u32 v6, v6"); a(f"v_mul_f32 v6, {fh(1.0/2048)}, v6")
    a("v_lshlrev_b32 v7, 2, v3"); a("v_cvt_f32_u32 v7, v7"); a("v_mul_f32 v7, v7, v6")
    for t in range(2):
        for jj in range(4):
            A, c, s = 8 + (jj & 1), 10 + 2 * (jj & 1), 11 + 2 * (jj & 1)
            a(f"v_fmamk_f32 v{A}, v6, {fh(16.0*t+jj)}, v7")
            a(f"v_cos_f32 v{c}, v{A}"); a(f"v_sin_f32 v{s}, v{A}")
            a(f"v_mul_f32 v{c}, {sc}, v{c}"); a(f"v_mul_f32 v{s}, {sc}, v{s}")
            a(f"v_cvt_pk_bf16_f32 v{G1(t)+jj}, v{c}, -v{s}")
            a(f"v_cvt_pk_bf16_f32 v{G2(t)+jj}, v{s}, v{c}")
    a("v_lshlrev_b32 v14, 4, v1")
    a("s_lshl_b32 s29, s3, 10"); a("v_add_u32 v15, s29, v14")
    a("s_cmp_eq_u32 s3, 7"); a("s_cbranch_scc1 K3_PHA")
    a("v_lshrrev_b32 v6, 2, v2"); a("v_lshlrev_b32 v6, 3, v6"); a("v_and_b32 v7, 3, v2"); a("v_add_u32 v6, v6, v7")
    a("s_lshl_b32 s29, s3, 5"); a("v_add_u32 v6, s29, v6"); a("v_cvt_f32_u32 v6, v6")
    a("v_lshlrev_b32 v7, 2, v3"); a("v_cvt_f32_u32 v7, v7")
    a("v_cmp_eq_u32 vcc, 0, v3")
    a("v_cndmask_b32 v246, 1.0, 0.5, vcc")
    a("v_cndmask_b32 v247, 0, 0.5, vcc")
    for b in range(2):
        if b: a("v_add_f32 v6, 4.0, v6")
        a(f"v_mul_f32 v8, {fh(1.0/448)}, v6")
        a("v_mul_f32 v9, v7, v8")
        a(f"v_mul_f32 v12, {fh(1.0/14)}, v6"); a("v_cos_f32 v12, v12"); a("v_add_f32 v12, v12, v12"); a("v_mov_b32 v13, v12")
        for i in range(2):
            for par in range(2):
                for jj in range(4):
                    co = 32 * i + 16 * (jj >> 1) + 2 * (jj & 1) + par
                    A = 10 + (jj & 1)
                    d = T(i) + (par * 4 + jj) * 2
                    a(f"v_fmamk_f32 v{A}, v8, {fh(float(co))}, v9")
                    a(f"v_cos_f32 v{d}, v{A}"); a(f"v_sin_f32 v{d+1}, -v{A}")
        for w in range(7):
            i = w & 1
            if w >= 2:
                for k in range(0, 16, 2):
                    a(f"v_pk_fma_f32 {vr(T(i)+k,2)}, {vr(12,2)}, {vr(T(1-i)+k,2)}, {vr(T(i)+k,2)} neg_lo:[0,0,1] neg_hi:[0,0,1]")
            for par in range(2):
                for jj in range(4):
                    d = T(i) + (par * 4 + jj) * 2
                    if w == 0 and par == 0 and jj == 0:
                        a(f"v_mul_f32 v10, v{d}, v246")
                        a(f"v_cvt_pk_bf16_f32 v{CI(b,0)}, v10, v{d+1}")
                    else:
                        a(f"v_cvt_pk_bf16_f32 v{CI(b,w+8*par)+jj}, v{d}, v{d+1}")
        a("v_mul_f32 v10, 0.5, v6"); a("v_cos_f32 v10, v10"); a("v_mul_f32 v10, v10, v247")
        a(f"v_cvt_pk_bf16_f32 v{CI(b,7)}, v10, 0")
        for k in range(1, 4): a(f"v_mov_b32 v{CI(b,7)+k}, 0")
    a.flush()
    a.label("K3_PHA")
    a("s_waitcnt vmcnt(2)")
    for t in range(2):
        for ti in range(2):
            a(f"{MF} {vr(UA(ti,0),4)}, {vr(ZF(ti,t),4)}, {vr(G1(t),4)}, {'0' if t==0 else vr(UA(ti,0),4)}")
            a(f"{MF} {vr(UA(ti,1),4)}, {vr(ZF(ti,t),4)}, {vr(G2(t),4)}, {'0' if t==0 else vr(UA(ti,1),4)}")
    for ti in range(2):
        for r in range(4):
            dst = (UE if (r & 1) == 0 else UO) + ti * 2 + (r >> 1)
            a(f"v_cvt_pk_bf16_f32 v{dst}, v{UA(ti,0)+r}, v{UA(ti,1)+r}")
    a(f"ds_write_b128 v15, {vr(UE,4)}")
    a(f"ds_write_b128 v15, {vr(UO,4)} offset:8192")
    a("s_cmp_eq_u32 s3, 7"); a("s_cbranch_scc0 K3_PHB")
    a("v_lshlrev_b32 v6, 6, v2"); a("v_mov_b32 v8, 0"); a("v_mov_b32 v9, 0")
    a("ds_write_b64 v6, v[8:9] offset:16440")
    a("s_waitcnt lgkmcnt(0)")
    a("s_endpgm")
    a.label("K3_PHB"); a.reset()
    a("s_waitcnt lgkmcnt(0)")
    a("s_barrier")
    order = list(range(8)) + list(range(8, 15))
    def lds_off(ks): return ks * 1024
    EA = lambda b: 48 + b * 4
    OA = lambda b: 56 + b * 4
    NB = 3
    for i in range(NB): a(f"ds_read_b128 {vr(UB(i),4)}, v14 offset:{lds_off(order[i])}")
    for n, ks in enumerate(order):
        rem = min(NB - 1, len(order) - 1 - n)
        a(f"s_waitcnt lgkmcnt({rem})")
        for b in range(2):
            acc = EA(b) if ks < 8 else OA(b)
            first = ks in (0, 8)
            a(f"{MF} {vr(acc,4)}, {vr(CI(b,ks),4)}, {vr(UB(n%NB),4)}, {'0' if first else vr(acc,4)}")
        if n + NB < len(order):
            a(f"ds_read_b128 {vr(UB(n%NB),4)}, v14 offset:{lds_off(order[n+NB])}")
    YL, YH, XU, HP, TP = 80, 88, 96, 112, 120
    for b in range(2):
        for r in range(0, 4, 2):
            a(f"v_pk_add_f32 {vr(YL+4*b+r,2)}, {vr(EA(b)+r,2)}, {vr(OA(b)+r,2)}")
            a(f"v_pk_add_f32 {vr(YH+4*b+r,2)}, {vr(EA(b)+r,2)}, {vr(OA(b)+r,2)} neg_lo:[0,1] neg_hi:[0,1]")
    a("s_waitcnt vmcnt(0)")
    for k in range(8):
        a(f"v_cvt_pk_bf16_f32 v{TP+k}, v{YL+2*k}, v{YL+2*k+1}")
    for k in range(8):
        for s_ in unpack2(YL + 2 * k, YL + 2 * k + 1, TP + k): a(s_)
        for s_ in unpack2(XU + 2 * k, XU + 2 * k + 1, XX + k): a(s_)
    for k in range(8):
        a(f"v_pk_add_f32 {vr(YL+2*k,2)}, {vr(YL+2*k,2)}, {vr(XU+2*k,2)}")
    for k in range(8):
        a(f"v_cvt_pk_bf16_f32 v{HP+k}, v{YL+2*k}, v{YL+2*k+1}")
    a("v_mov_b32 v8, 0x3f803f80")
    for k in range(8):
        a(f"v_dot2_f32_bf16 v10, v{HP+k}, v8, {'0' if k==0 else 'v10'}")
        a(f"v_dot2_f32_bf16 v11, v{HP+k}, v{HP+k}, {'0' if k==0 else 'v11'}")
    a("s_lshl_b32 s29, s11, 1"); a("s_add_u32 s29, s29, s10"); a("s_mul_i32 s29, s29, 14"); a("s_add_u32 s29, s29, s3"); a("s_lshl_b32 s29, s29, 10")
    a("s_add_u32 s31, s29, 7168")
    a(f"buffer_store_dwordx4 {vr(HP,4)}, v14, s[20:23], s29 offen")
    a(f"buffer_store_dwordx4 {vr(HP+4,4)}, v14, s[20:23], s31 offen")
    for s_ in xq_reduce([10, 11], [12, 13]): a(s_)
    a("v_lshlrev_b32 v6, 6, v2"); a("s_lshl_b32 s28, s3, 3"); a("v_add_u32 v7, s28, v6")
    a("ds_write_b64 v7, v[10:11] offset:16384")
    for k in range(8):
        for s_ in unpack2(YL + 2 * k, YL + 2 * k + 1, HP + k): a(s_)
    a("s_waitcnt lgkmcnt(0)")
    a("s_barrier")
    for k in range(4): a(f"ds_read_b128 {vr(XU+4*k,4)}, v6 offset:{16384+16*k}")
    a("s_waitcnt lgkmcnt(0)")
    for k in range(4): a(f"v_pk_add_f32 {vr(XU+2*k,2)}, {vr(XU+2*k,2)}, {vr(XU+8+2*k,2)}")
    for k in range(2): a(f"v_pk_add_f32 {vr(XU+2*k,2)}, {vr(XU+2*k,2)}, {vr(XU+4+2*k,2)}")
    a(f"v_pk_add_f32 {vr(XU,2)}, {vr(XU,2)}, {vr(XU+2,2)}")
    a(f"v_mov_b32 v{XU+2}, v{XU}"); a(f"v_mov_b32 v{XU+3}, v{XU+1}")
    for s_ in ln_params2(XU, XU + 1, XU + 2, XU + 3, XU + 4): a(s_)
    a(f"v_mov_b32 v{XU+4}, v{XU+1}"); a(f"v_mov_b32 v{XU+5}, v{XU+1}"); a(f"v_mov_b32 v{XU+1}, v{XU}")
    for k in range(8):
        a(f"v_pk_add_f32 {vr(YL+2*k,2)}, {vr(YL+2*k,2)}, {vr(XU,2)} neg_lo:[0,1] neg_hi:[0,1]")
    for k in range(8): a(f"v_cvt_pk_bf16_f32 v{TP+k}, v{YL+2*k}, v{YL+2*k+1}")
    for k in range(8):
        for s_ in unpack2(YL + 2 * k, YL + 2 * k + 1, TP + k): a(s_)
    for k in range(8): a(f"v_pk_mul_f32 {vr(YL+2*k,2)}, {vr(YL+2*k,2)}, {vr(XU+4,2)}")
    for k in range(8): a(f"v_cvt_pk_bf16_f32 v{TP+k}, v{YL+2*k}, v{YL+2*k+1}")
    a(f"buffer_store_dwordx4 {vr(TP,4)}, v14, s[24:27], s29 offen")
    a(f"buffer_store_dwordx4 {vr(TP+4,4)}, v14, s[24:27], s31 offen")
    a.label("K3_END")
    a("s_endpgm")
    a.label("K3_AUX"); a.reset()
    a("s_sub_u32 s33, s2, 128")
    aux_wd(a, 33)
    return dict(name="k3_kernel", vgpr=248, acc=248, grid=128 + NAUX, block=512, lds=17408)

def gen_k4(a):
    kernel_begin(a, "k4_kernel")
    a("s_cmp_ge_u32 s2, 224"); a("s_cbranch_scc1 K4_END")
    a("s_load_dwordx2 s[6:7], s[0:1], 72")
    lane_ids(a)
    a("s_bfe_u32 s8, s2, 0x20001"); a("s_lshl_b32 s8, s8, 2"); a("s_bfe_u32 s9, s2, 0x20003"); a("s_add_u32 s8, s8, s9")
    a("s_and_b32 s9, s2, 1"); a("s_mul_i32 s9, s9, 7"); a("s_lshr_b32 s10, s2, 5"); a("s_add_u32 s9, s9, s10")
    a("s_lshl_b32 s9, s9, 2"); a("s_add_u32 s9, s9, s3")
    a("v_lshlrev_b32 v4, 4, v1"); a("v_add_u32 v5, 57344, v4")
    a("s_mul_i32 s24, s3, 28672")
    a("s_mul_i32 s25, s8, 114688"); a("s_add_u32 s25, s25, s24")
    a("s_mul_i32 s26, s9, 57344")
    a("s_waitcnt lgkmcnt(0)")
    srd(a, 12, 6, OFF_LN, SZ_LN); srd(a, 16, 6, OFF_WGU, SZ_WGU); srd(a, 20, 6, OFF_HH, SZ_HH)
    ACC = lambda rp, mb: 16 + (rp * 4 + mb) * 4
    LB = lambda buf, rp: 144 + (buf * 8 + rp) * 4
    WA = lambda t, mb: (t * 4 + mb) * 4
    issued = []
    def loads(t):
        for k in range(2):
            off = k * 14336 + t * 1024
            a(f"s_add_u32 m0, s24, {off}")
            a(f"s_add_u32 s27, s25, {off}")
            a(f"buffer_load_dwordx4 v4, s[12:15], s27 offen lds")
            issued.append(t)
        a(f"s_add_u32 s28, s26, {t*4096}")
        for mb in range(4):
            a(f"buffer_load_dwordx4 {ar(WA(t,mb),4)}, v4, s[16:19], s28 offen offset:{1024*mb}")
            issued.append(t)
    def wait(t):
        n = sum(1 for x in issued if x > t)
        a(f"s_waitcnt vmcnt({n})")
    def reads(t):
        o = []
        for rp in range(8):
            off = rp * 14336 + t * 1024
            va = "v4"
            if off >= 57344: off -= 57344; va = "v5"
            o.append(f"ds_read_b128 {vr(LB(t&1,rp),4)}, {va} offset:{off}")
        return o
    PRE = 10
    for t in range(PRE): loads(t)
    wait(0); a("s_barrier")
    for s_ in reads(0): a(s_)
    for t in range(14):
        if t + 1 < 14:
            wait(t + 1); a("s_barrier")
            for s_ in reads(t + 1): a(s_)
            if t + PRE < 14: loads(t + PRE)
            a("s_waitcnt lgkmcnt(8)")
        else:
            a("s_waitcnt lgkmcnt(0)")
        for rp in range(8):
            for mb in range(4):
                c = "0" if t == 0 else vr(ACC(rp, mb), 4)
                a(f"{MF} {vr(ACC(rp,mb),4)}, {ar(WA(t,mb),4)}, {vr(LB(t&1,rp),4)}, {c}")
    a(f"s_mov_b32 s30, {fh(-math.log2(math.e))}"); a("s_mov_b32 s31, s30")
    a("s_mul_i32 s29, s8, 448"); a("s_add_u32 s29, s29, s9"); a("s_lshl_b32 s29, s29, 10")
    OUT = 144
    for rp in range(8):
        for b in range(2):
            g, u = ACC(rp, b), ACC(rp, 2 + b)
            for r in range(0, 4, 2):
                a(f"v_pk_mul_f32 {vr(g+r,2)}, {vr(g+r,2)}, s[30:31]")
            for r in range(4): a(f"v_exp_f32 v{g+r}, v{g+r}")
            for r in range(0, 4, 2):
                a(f"v_pk_add_f32 {vr(g+r,2)}, {vr(g+r,2)}, 1.0 op_sel_hi:[1,0]")
            for r in range(4): a(f"v_rcp_f32 v{g+r}, v{g+r}")
            for r in range(0, 4, 2):
                a(f"v_pk_mul_f32 {vr(g+r,2)}, {vr(g+r,2)}, {vr(u+r,2)}")
            for r in range(0, 4, 2):
                a(f"v_cvt_pk_bf16_f32 v{OUT+rp*4+b*2+r//2}, v{g+r}, v{g+r+1}")
        a(f"buffer_store_dwordx4 {vr(OUT+rp*4,4)}, v4, s[20:23], s29 offen")
        if rp < 7: a("s_add_u32 s29, s29, 57344")
    a.label("K4_END")
    a("s_endpgm")
    return dict(name="k4_kernel", vgpr=208 + 224, acc=208, grid=224, block=256, lds=114688)

def gen_k5(a):
    kernel_begin(a, "k5_kernel")
    a("s_cmp_ge_u32 s2, 224"); a("s_cbranch_scc1 K5_END")
    a("s_load_dwordx2 s[4:5], s[0:1], 56")
    a("s_load_dwordx2 s[6:7], s[0:1], 72")
    lane_ids(a)
    a("s_and_b32 s8, s2, 7"); a("s_lshl_b32 s8, s8, 2"); a("s_bfe_u32 s9, s2, 0x20003"); a("s_add_u32 s8, s8, s9")
    a("s_lshr_b32 s9, s2, 5")
    a("v_lshlrev_b32 v4, 4, v1")
    a("s_mul_i32 s10, s3, 14")
    a("s_mul_i32 s28, s8, 224"); a("s_add_u32 s28, s28, s10"); a("s_lshl_b32 s28, s28, 10")
    for k in range(1, 4): a(f"s_add_u32 s{28+k}, s28, {57344*k}")
    a("s_mul_i32 s32, s9, 56"); a("s_add_u32 s32, s32, s10"); a("s_lshl_b32 s32, s32, 12")
    a("s_lshl_b32 s33, s8, 2"); a("s_add_u32 s33, s33, s3")
    a("s_mul_i32 s34, s33, 14"); a("s_lshl_b32 s35, s9, 1"); a("s_add_u32 s34, s34, s35"); a("s_lshl_b32 s34, s34, 10")
    a("s_waitcnt lgkmcnt(0)")
    srd(a, 12, 6, OFF_HH, SZ_HH); srd(a, 16, 6, OFF_WD, SZ_WD); srd(a, 20, 6, OFF_H, SZ_LN); srd(a, 24, 4, 0, SZ_X)
    ACC = lambda rp, nb: 16 + (rp * 4 + nb) * 4
    HR = 80
    NS = 7
    RH = lambda st, rp: (st * 8 + rp) * 4
    RW = lambda st, nb: (st * 8 + 4 + nb) * 4
    a(f"buffer_load_dwordx4 {vr(HR,4)}, v4, s[20:23], s34 offen")
    a(f"buffer_load_dwordx4 {vr(HR+4,4)}, v4, s[20:23], s34 offen offset:1024")
    issued = []
    def loads(i):
        st = i % NS
        if i and i % 4 == 0:
            for k in range(4): a(f"s_add_u32 s{28+k}, s{28+k}, 4096")
        for k in range(4):
            a(f"buffer_load_dwordx4 {ar(RH(st,k),4)}, v4, s[12:15], s{28+k} offen offset:{1024*(i%4)}")
            a(f"buffer_load_dwordx4 {ar(RW(st,k),4)}, v4, s[16:19], s32 offen offset:{1024*k}")
            issued.extend([i, i])
        a("s_add_u32 s32, s32, 4096")
    for i in range(NS): loads(i)
    for i in range(14):
        n = sum(1 for x in issued if x > i)
        a(f"s_waitcnt vmcnt({n})")
        st = i % NS
        for rp in range(4):
            for nb in range(4):
                c = "0" if i == 0 else vr(ACC(rp, nb), 4)
                a(f"{MF} {vr(ACC(rp,nb),4)}, {ar(RW(st,nb),4)}, {ar(RH(st,rp),4)}, {c}")
        if i + NS < 14: loads(i + NS)
    a("s_lshl_b32 s36, s3, 12"); a("v_add_u32 v5, s36, v4")
    a("s_lshl_b32 s36, s3, 14"); a("v_add_u32 v6, s36, v4")
    for rp in range(4):
        for nb in range(4):
            a(f"ds_write_b128 v5, {vr(ACC(rp,nb),4)} offset:{rp*16384+nb*1024}")
    a("s_waitcnt lgkmcnt(0)")
    a("s_barrier")
    for sw in range(4):
        for nb in range(4):
            a(f"ds_read_b128 {vr(16+(sw*4+nb)*4,4)}, v6 offset:{sw*4096+nb*1024}")
    a("v_mul_u32_u24 v7, 57344, v2"); a("v_lshl_add_u32 v7, v3, 4, v7")
    a("s_and_b32 s36, s33, 1"); a("s_mul_i32 s36, s36, 917504"); a("s_lshr_b32 s37, s33, 1"); a("s_mul_i32 s37, s37, 896"); a("s_add_u32 s36, s36, s37")
    a("s_lshl_b32 s37, s9, 7"); a("s_add_u32 s36, s36, s37")
    for sw in range(1, 4):
        a(f"s_waitcnt lgkmcnt({4*(3-sw)})")
        for k in range(0, 16, 2):
            a(f"v_pk_add_f32 {vr(16+k,2)}, {vr(16+k,2)}, {vr(16+sw*16+k,2)}")
    TP, XU = 96, 104
    for k in range(8): a(f"v_cvt_pk_bf16_f32 v{TP+k}, v{16+2*k}, v{17+2*k}")
    for k in range(8):
        for s_ in unpack2(16 + 2 * k, 17 + 2 * k, TP + k): a(s_)
        for s_ in unpack2(XU + 2 * k, XU + 2 * k + 1, HR + k): a(s_)
    for k in range(8): a(f"v_pk_add_f32 {vr(16+2*k,2)}, {vr(16+2*k,2)}, {vr(XU+2*k,2)}")
    for k in range(8): a(f"v_cvt_pk_bf16_f32 v{TP+k}, v{16+2*k}, v{17+2*k}")
    a(f"buffer_store_dwordx4 {vr(TP,4)}, v7, s[24:27], s36 offen")
    a(f"buffer_store_dwordx4 {vr(TP+4,4)}, v7, s[24:27], s36 offen offset:64")
    a.label("K5_END")
    a("s_endpgm")
    return dict(name="k5_kernel", vgpr=120 + 224, acc=120, grid=224, block=256, lds=65536)

def build(gens, hdr_src):
    a = Asm()
    infos = [g(a) for g in gens]
    hdr = [l for l in open(hdr_src).read().splitlines() if l.startswith(";") and "@launch" not in l and "Override launch" not in l and "grid=ceil" not in l]
    out = "\n".join(hdr) + "\n"
    for k in infos:
        out += f"; @launch kernel={k['name']} grid=({k['grid']},1,1) block=({k['block']},1,1) lds={k['lds']}\n"
    out += '.amdgcn_target "amdgcn-amd-amdhsa--gfx950"\n.text\n' + a.text()
    out += '.section .rodata,"a"\n'
    for k in infos:
        out += f""".p2align 6
.amdhsa_kernel {k['name']}
  .amdhsa_next_free_vgpr {k['vgpr']}
  .amdhsa_next_free_sgpr 64
  .amdhsa_accum_offset {k['acc']}
  .amdhsa_group_segment_fixed_size 0
  .amdhsa_kernarg_size 80
  .amdhsa_user_sgpr_count 2
  .amdhsa_user_sgpr_kernarg_segment_ptr 1
  .amdhsa_system_sgpr_workgroup_id_x 1
.end_amdhsa_kernel
"""
    return out

if __name__ == "__main__":
    dst = sys.argv[1] if len(sys.argv) > 1 else f"cdna_kernels/{NAME}.s"
    txt = build([gen_k1, gen_k2, gen_k3, gen_k4, gen_k5], f"cdna_kernels/{NAME}.s.ref")
    open(dst, "w").write(txt)
    print("wrote", dst, len(txt), "bytes")
```
